```python
import torch

def _softmax(x, axis=-1):
    return torch.softmax(x, dim=axis)

def _gelu(x):
    return torch.nn.functional.gelu(x, approximate='tanh')

def _silu(x):
    return torch.nn.functional.silu(x)

def _sigmoid(x):
    return torch.sigmoid(x)

def _layernorm(x, axis=-1, eps=1e-05):
    m = x.mean(dim=axis, keepdim=True)
    v = x.var(dim=axis, keepdim=True, unbiased=False)
    return (x - m) / torch.sqrt(v + eps)

def _scatter_add(tgt, idx, src, axis=0):
    return tgt.clone().index_add_(axis, idx, src)

def _segment_sum(src, seg, n):
    out = torch.zeros((n,) + src.shape[1:], dtype=src.dtype)
    return out.index_add_(0, seg, src)

def _pad(x, pw):
    flat = tuple((v for pair in reversed(pw) for v in pair))
    return torch.nn.functional.pad(x, flat)
kernel_name = 'adaLN_cond__gqa_block_cached__geglu_ffn__decode'

def setup_inputs():

    _w = lambda a: (lambda t: t.to(torch.bfloat16) if t.is_floating_point() else t)(torch.as_tensor(a))

    def _A_setup():
        B, Sq, D = (4, 1, 512)
        Hq, Hkv, Sk, Dh = (32, 8, 8192, 128)
        assert Hq % Hkv == 0, (Hq, Hkv)
        return {'x': _w((lambda *s: torch.randn(*s, dtype=torch.bfloat16) * 0.1)(B, Sq, D)), 'k_cache': _w((lambda *s: torch.randn(*s, dtype=torch.bfloat16) * 0.8)(B, Hkv, Sk, Dh)), 'v_cache': _w((lambda *s: torch.randn(*s, dtype=torch.bfloat16) * 1.6)(B, Hkv, Sk, Dh)), 'wq': _w((lambda *s: torch.randn(*s, dtype=torch.bfloat16) * 0.8)(D, Hq * Dh) * D ** (-0.5)), 'wo': _w((lambda *s: torch.randn(*s, dtype=torch.bfloat16) * 1.6)(Hq * Dh, D) * (Hq * Dh) ** (-0.5))}
    _A_in = _A_setup()

    def _B_setup():
        B, S, D, F = (4, 1, 512, 1792)
        return {'x': _w((lambda *s: torch.randn(*s, dtype=torch.bfloat16) * 0.1)(B, S, D)), 'w_gate': _w((lambda *s: torch.randn(*s, dtype=torch.bfloat16) * 0.1)(D, F)), 'w_up': _w((lambda *s: torch.randn(*s, dtype=torch.bfloat16) * 0.1)(D, F)), 'w_down': _w((lambda *s: torch.randn(*s, dtype=torch.bfloat16) * 0.1)(F, D))}
    _B_in = _B_setup()
    return {'A_x': _A_in['x'], 'A_k_cache': _A_in['k_cache'], 'A_v_cache': _A_in['v_cache'], 'A_wq': _A_in['wq'], 'A_wo': _A_in['wo'], 'B_x': _B_in['x'], 'B_w_gate': _B_in['w_gate'], 'B_w_up': _B_in['w_up'], 'B_w_down': _B_in['w_down'], 'c': _w((lambda *s: torch.randn(*s, dtype=torch.bfloat16) * 0.8)(4, 512) * 8.0), 'w_mod': _w((lambda *s: torch.randn(*s, dtype=torch.bfloat16) * 0.8)(512, 6 * 512) * 512 ** (-0.5) * 8.0)}

def reference(A_x, A_k_cache, A_v_cache, A_wq, A_wo, B_x, B_w_gate, B_w_up, B_w_down, c, w_mod):

    def _A_ref(x, k_cache, v_cache, wq, wo):
        B, Sq, D = x.shape
        Hq, Dh = (32, 128)
        Hkv = k_cache.shape[1]
        rep = Hq // Hkv
        q = (lambda x, *d: x.permute(*d))((x @ wq).reshape(B, Sq, Hq, Dh), 0, 2, 1, 3)
        k = (lambda x, n, axis: torch.repeat_interleave(x, n, dim=axis))(k_cache, rep, axis=1)
        v = (lambda x, n, axis: torch.repeat_interleave(x, n, dim=axis))(v_cache, rep, axis=1)
        scores = torch.einsum('bhqd,bhkd->bhqk', q, k) * Dh ** (-0.5)
        p = _softmax(scores, axis=-1)
        o = torch.einsum('bhqk,bhkd->bhqd', p, v)
        return (lambda x, *d: x.permute(*d))(o, 0, 2, 1, 3).reshape(B, Sq, Hq * Dh) @ wo

    def _B_ref(x, w_gate, w_up, w_down):
        return _gelu(x @ w_gate) * (x @ w_up) @ w_down
    x = A_x
    mod = (_silu(c) @ w_mod).reshape(c.shape[0], 6, 1, -1)
    sa, ca, ga, sb, cb, gb = (mod[:, 0].clone(), mod[:, 1].clone(), mod[:, 2].clone(), mod[:, 3].clone(), mod[:, 4].clone(), mod[:, 5].clone())
    h = _layernorm(x, axis=-1) * (1 + ca) + sa
    x = x + ga * _A_ref(h, A_k_cache, A_v_cache, A_wq, A_wo)
    h = _layernorm(x, axis=-1) * (1 + cb) + sb
    x = x + gb * _B_ref(h, B_w_gate, B_w_up, B_w_down)
    return x
```

```python
import re

TRANS = ("v_exp_f32", "v_log_f32", "v_rcp_f32", "v_rsq_f32", "v_sqrt_f32", "v_sin_f32", "v_cos_f32")


def _regs(tok):
    tok = tok.strip()
    neg = tok.lstrip("-")
    m = re.fullmatch(r"(?:abs\()?([vs])(\d+)\)?", neg)
    if m:
        return [(m.group(1), int(m.group(2)))]
    m = re.fullmatch(r"([vs])\[(\d+):(\d+)\]", neg)
    if m:
        return [(m.group(1), i) for i in range(int(m.group(2)), int(m.group(3)) + 1)]
    if neg == "vcc":
        return [("s", "vcc")]
    if neg == "exec":
        return [("s", "exec")]
    if neg == "m0":
        return [("s", "m0")]
    return []


class Ins:
    def __init__(self, text):
        self.text = text
        t = text.split(";")[0].strip()
        self.label = t.endswith(":")
        self.mn = t.split()[0] if t else ""
        rest = t[len(self.mn):].strip()
        ops, depth, cur = [], 0, ""
        for ch in rest:
            if ch == "[":
                depth += 1
            if ch == "]":
                depth -= 1
            if ch == "," and depth == 0:
                ops.append(cur.strip())
                cur = ""
            else:
                cur += ch
        if cur.strip():
            ops.append(cur.strip())
        self.mods = ""
        if ops:
            parts = ops[-1].split(None, 1)
            ops[-1] = parts[0]
            if len(parts) > 1:
                self.mods = parts[1]
        self.ops = ops
        mn = self.mn
        self.mfma = mn.startswith("v_mfma")
        self.valu = mn.startswith("v_") and not self.mfma
        self.trans = any(mn.startswith(x) for x in TRANS)
        self.dpp = "_dpp" in mn
        self.permlane = mn.startswith("v_permlane")
        self.vmem = mn.startswith("buffer_") or mn.startswith("global_")
        self.ds = mn.startswith("ds_")
        self.salu = mn.startswith("s_")
        self.lds_dma = self.vmem and re.search(r"\blds\b", self.mods) is not None
        self.store = (self.vmem and "store" in mn) or (self.ds and "write" in mn)
        self.wide_store = self.vmem and "store" in mn and ("x4" in mn or "x3" in mn)
        self.readlane = mn.startswith("v_readlane") or mn.startswith("v_readfirstlane")
        R = [_regs(o) for o in ops]
        flat = lambda l: [x for r in l for x in r]
        self.defs, self.uses = [], []
        self.srcc = []
        self.store_data = []
        if self.label or not mn:
            pass
        elif self.mfma:
            self.defs = R[0]
            self.uses = flat(R[1:])
            self.srcab = R[1] + R[2]
            self.srcc = R[3]
        elif self.valu:
            if self.permlane:
                self.defs = R[0] + R[1]
                self.uses = R[0] + R[1]
            else:
                self.defs = list(R[0])
                self.uses = flat(R[1:])
                if mn.startswith("v_fmac") or mn.startswith("v_dot2c") or (self.dpp and "bank_mask:0xf" not in self.mods) \
                        or (self.dpp and "row_mask:0xf" not in self.mods) or mn.startswith("v_writelane"):
                    self.uses += R[0]
                if "_co_" in mn:
                    self.defs += R[1]
        elif self.vmem:
            if self.store or self.lds_dma:
                self.uses = flat(R)
                if self.store:
                    self.store_data = R[0] if mn.startswith("buffer_") else R[1]
            else:
                self.defs = R[0]
                self.uses = flat(R[1:])
        elif self.ds:
            if self.store or mn.startswith("ds_add"):
                self.uses = flat(R)
            else:
                self.defs = R[0]
                self.uses = flat(R[1:])
        elif self.salu:
            if mn.startswith("s_cmp") or mn.startswith("s_bitcmp") or mn.startswith("s_cbranch") or mn in ("s_waitcnt", "s_nop", "s_barrier", "s_sleep", "s_setprio", "s_branch", "s_endpgm"):
                self.uses = flat(R)
            else:
                self.defs = R[0] if R else []
                self.uses = flat(R[1:])
        self.states = 1
        if mn == "s_nop":
            self.states = int(ops[0], 0) + 1
        if self.label or not mn or mn.startswith("."):
            self.states = 0


def required(prev, cur):
    pd = set(prev.defs)
    cu = set(cur.uses)
    cd = set(cur.defs)
    need = 0
    vdef = {r for r in pd if r[0] == "v"}
    sdef = {r for r in pd if r[0] == "s"}
    if prev.valu:
        if cur.dpp and vdef & cu:
            need = max(need, 2)
        if cur.permlane and vdef & cu:
            need = max(need, 2)
        if cur.readlane and vdef & cu:
            need = max(need, 1)
        if cur.mfma and vdef & cu:
            need = max(need, 2)
        if prev.trans and (cur.valu or cur.mfma) and not cur.trans and vdef & cu:
            need = max(need, 1)
        if sdef:
            if (cur.valu) and sdef & cu:
                need = max(need, 4 if (cur.readlane or cur.mn.startswith("v_writelane")) else 2)
            if cur.vmem and sdef & cu:
                need = max(need, 5)
            if cur.salu and sdef & cu:
                need = max(need, 1)
            if cur.mn.startswith("s_cbranch_vcc") and ("s", "vcc") in sdef:
                need = max(need, 1)
        if "sdwa" in prev.mn and cur.valu and vdef & (cu | cd):
            need = max(need, 1)
    if (prev.ds or prev.vmem) and cur.dpp and vdef & cu:
        need = max(need, 2)
    if prev.mfma:
        if cur.mfma:
            if vdef & set(cur.srcab):
                need = max(need, 8)
            if vdef & set(cur.srcc) and list(prev.defs) != list(cur.srcc):
                need = max(need, 6)
            if vdef & cd and list(prev.defs) != list(cur.srcc):
                need = max(need, 8)
        elif cur.valu or cur.vmem or cur.ds:
            if vdef & (cu | cd):
                need = max(need, 8)
        if cur.valu and set(prev.srcc) & cd:
            need = max(need, 3)
    if prev.wide_store and (cur.valu or cur.vmem or cur.ds) and set(prev.store_data) & cd:
        need = max(need, 2)
    if prev.salu and ("s", "m0") in sdef and cur.lds_dma:
        need = max(need, 1)
    return need


class Asm:
    def __init__(self):
        self.lines = []
        self.uid = 0

    def __call__(self, text):
        for ln in text.split("\n"):
            ln = ln.strip()
            if ln:
                self.lines.append(ln)

    def label(self, base):
        self.uid += 1
        return f"L_{base}_{self.uid}"

    def finish(self):
        out = []
        hist = []
        for ln in self.lines:
            if ln.startswith(";") or ln.startswith("."):
                out.append(ln)
                continue
            cur = Ins(ln)
            if cur.label:
                out.append(ln)
                continue
            need = 0
            dist = 0
            for prev in reversed(hist):
                if dist >= 10:
                    break
                r = required(prev, cur)
                if r > dist:
                    need = max(need, r - dist)
                dist += prev.states
            if need:
                nop = Ins(f"s_nop {need - 1}")
                out.append("    " + nop.text)
                hist.append(nop)
            out.append("    " + ln)
            hist.append(cur)
            if len(hist) > 24:
                hist = hist[-24:]
        return "\n".join(out) + "\n"
```

```python
import sys
sys.path.insert(0, "dev")
from asmlib import Asm
NAME = "adaLN_cond__gqa_block_cached__geglu_ffn__decode"
def gen(fn, mode, own, others, pol="nt"):
    A = Asm()
    A(f"; @launch grid=(256,1,1) block=(768,1,1) lds=100000")
    A('.amdgcn_target "amdgcn-amd-amdhsa--gfx950"\n.text')
    A(f".globl {NAME}_kernel\n.p2align 8\n.type {NAME}_kernel,@function\n{NAME}_kernel:")
    A(f"s_cmp_ge_u32 s2, 256\ns_cbranch_scc1 L_end")
    A("s_memrealtime s[40:41]")
    A("s_load_dwordx2 s[8:9], s[0:1], 104\ns_load_dwordx2 s[16:17], s[0:1], 8\ns_load_dwordx2 s[24:25], s[0:1], 24")
    A("v_lshrrev_b32 v1, 6, v0\nv_and_b32 v0, 63, v0\ns_nop 0\nv_readfirstlane_b32 s3, v1")
    A("v_and_b32 v1, 15, v0\nv_lshrrev_b32 v2, 4, v0")
    A("s_waitcnt lgkmcnt(0)\ns_mov_b32 s10, 0x800000\ns_mov_b32 s11, 0x20000\ns_mov_b32 s26, 0x400000\ns_mov_b32 s27, 0x20000")
    A("s_mov_b64 s[42:43], 0\ns_mov_b64 s[44:45], 0")
    A("s_lshr_b32 s21, s2, 3\ns_sub_u32 s22, s21, 6")
    A("s_cmp_lt_u32 s3, 8\ns_cbranch_scc1 L_stream")
    A("s_cmp_ge_u32 s22, 8\ns_cbranch_scc1 L_end")
    A("s_setprio 3")
    A("s_sub_u32 s23, s3, 8")
    A("s_and_b32 s20, s2, 7\ns_lshl_b32 s28, s22, 3\ns_add_u32 s28, s28, s20")
    if mode == "tile":
        A("s_lshl_b32 s29, s23, 20\ns_lshl_b32 s30, s28, 7\ns_add_u32 s29, s29, s30")
        A("v_lshlrev_b32 v3, 16, v2\nv_lshl_add_u32 v3, v1, 3, v3\nv_add_u32 v3, s29, v3")
        for kb in range(4):
            for i in range(8):
                r = 40 + (kb*8+i)*2
                A(f"s_mov_b32 s30, {(32*kb+i)*8192}\nbuffer_load_dwordx2 v[{r}:{r+1}], v3, s[24:27], s30 offen {pol}")
    elif mode == "contig":
        A("s_lshl_b32 s29, s28, 16\ns_lshl_b32 s30, s23, 10\ns_add_u32 s29, s29, s30")
        A("v_lshl_add_u32 v3, v0, 4, s29")
        for i in range(16):
            A(f"s_mov_b32 s30, {i*4096}\nbuffer_load_dwordx4 v[{40+4*i}:{43+4*i}], v3, s[24:27], s30 offen {pol}")
    elif mode == "t256":
        A("s_and_b32 s30, s28, 1\ns_lshl_b32 s29, s30, 21\ns_lshl_b32 s30, s23, 19\ns_add_u32 s29, s29, s30")
        A("s_lshr_b32 s30, s28, 1\ns_lshl_b32 s30, s30, 8\ns_add_u32 s29, s29, s30")
        A("v_lshlrev_b32 v3, 16, v2\nv_lshl_add_u32 v3, v1, 4, v3\nv_add_u32 v3, s29, v3")
        for kb in range(2):
            for i in range(8):
                r = 40 + (kb*8+i)*4
                A(f"s_mov_b32 s30, {(32*kb+i)*8192}\nbuffer_load_dwordx4 v[{r}:{r+3}], v3, s[24:27], s30 offen {pol}")
    A("s_memrealtime s[42:43]")
    A("s_waitcnt vmcnt(0)")
    A("s_branch L_stamp")
    A("L_stream:")
    if not own:
        A("s_cmp_lt_u32 s22, 8\ns_cbranch_scc1 L_end")
    if not others:
        A("s_cmp_ge_u32 s22, 8\ns_cbranch_scc1 L_end")
    A("s_and_b32 s20, s2, 7\ns_lshl_b32 s20, s20, 5\ns_add_u32 s20, s20, s21\ns_lshl_b32 s20, s20, 18")
    A("s_add_u32 s16, s16, s20\ns_addc_u32 s17, s17, 0\ns_mov_b32 s18, 0x40000\ns_mov_b32 s19, 0x20000")
    A("s_lshl_b32 s31, s3, 10\nv_lshlrev_b32 v3, 4, v0")
    for j in range(32):
        if j >= 4: A("s_waitcnt vmcnt(3)")
        if j == 4: A("s_memrealtime s[42:43]")
        A(f"buffer_load_dwordx4 v[{8 + 4*(j%4)}:{11 + 4*(j%4)}], v3, s[16:19], s31 offen nt")
        A("s_add_u32 s31, s31, 8192")
    A("s_waitcnt vmcnt(0)")
    A("L_stamp:")
    A("s_memrealtime s[44:45]\ns_waitcnt lgkmcnt(0)")
    A("s_mul_i32 s30, s2, 12\ns_add_u32 s30, s30, s3\ns_lshl_b32 s30, s30, 5")
    A("v_mov_b32 v4, s40\nv_mov_b32 v5, s41\nv_mov_b32 v6, s42\nv_mov_b32 v7, s43\nv_mov_b32 v8, s44\nv_mov_b32 v9, s45\nv_mov_b32 v10, 0\nv_mov_b32 v11, 0\nv_mov_b32 v1, 0")
    A("s_mov_b64 exec, 1")
    A("buffer_store_dwordx4 v[4:7], v1, s[8:11], s30 offen\nbuffer_store_dwordx4 v[8:11], v1, s[8:11], s30 offen offset:16")
    A("L_end:\ns_endpgm")
    A('.section .rodata,"a"\n.p2align 6')
    A(f".amdhsa_kernel {NAME}_kernel\n.amdhsa_next_free_vgpr 168\n.amdhsa_next_free_sgpr 64\n.amdhsa_accum_offset 168\n.amdhsa_group_segment_fixed_size 0\n.amdhsa_kernarg_size 112\n.amdhsa_user_sgpr_count 2\n.amdhsa_user_sgpr_kernarg_segment_ptr 1\n.amdhsa_system_sgpr_workgroup_id_x 1\n.end_amdhsa_kernel")
    open(fn, "w").write(A.finish())
V = {}
for m in ("tile", "contig", "t256"):
    for own, oth in ((0,0),(0,1),(1,1)):
        V[f"w_{m}_{own}{oth}"] = (m, own, oth)
for k, v in V.items(): gen(f"dev/{k}.s", *v)
print(" ".join(V)); print(", ".join(f'"dev/{k}.s"' for k in V))
```
